```python
import torch

def _softmax(x, axis=-1):
    return torch.softmax(x, dim=axis)
def _gelu(x):
    return torch.nn.functional.gelu(x, approximate="tanh")
def _silu(x):
    return torch.nn.functional.silu(x)
def _sigmoid(x):
    return torch.sigmoid(x)
def _layernorm(x, axis=-1, eps=1e-5):
    m = x.mean(dim=axis, keepdim=True)
    v = x.var(dim=axis, keepdim=True, unbiased=False)
    return (x - m) / torch.sqrt(v + eps)
def _scatter_add(tgt, idx, src, axis=0):
    return tgt.clone().index_add_(axis, idx, src)
def _segment_sum(src, seg, n):
    out = torch.zeros((n,) + src.shape[1:], dtype=src.dtype)
    return out.index_add_(0, seg, src)
def _pad(x, pw):
    flat = tuple(v for pair in reversed(pw) for v in pair)
    return torch.nn.functional.pad(x, flat)

kernel_name = 'standalone__paged_block_table_kv_radixattention__decode'

def setup_inputs():

    _w = (lambda a: (lambda t: t.to(torch.bfloat16) if t.is_floating_point() else t)(torch.as_tensor(a)))
    B, H, Hkv, Dh = 1, 32, 16, 128
    Lk = 8192
    bs = 16
    nb = max(2, Lk // bs)
    P = max(1, nb // 2)
    n_phys = P + B * (nb - P)
    shared = torch.arange(P, dtype=torch.int64)
    priv = P + torch.arange(B * (nb - P), dtype=torch.int64).reshape(B, nb - P)
    bt = torch.cat([torch.tile(shared[None, :], (B, 1)), priv], dim=1)
    ctx = nb * bs - (torch.arange(1, B + 1, dtype=torch.int64) * 2654435761) % max(1, (nb * bs - P * bs) // 2)
    return {
        "q": _w((lambda *s: torch.randn(*s, dtype=torch.bfloat16) * 0.8)(B, H, Dh)),
        "k_cache": _w((lambda *s: torch.randn(*s, dtype=torch.bfloat16) * 0.8)(n_phys, bs, Hkv, Dh)),
        "v_cache": _w((lambda *s: torch.randn(*s, dtype=torch.bfloat16) * 0.05)(n_phys, bs, Hkv, Dh)),
        "block_table": _w(bt.to(torch.int64)),
        "ctx_lens": _w(torch.as_tensor(ctx).to(torch.int64)),
    }

def reference(q, k_cache, v_cache, block_table, ctx_lens):
    B, H, Dh = q.shape
    n_phys, bs, Hkv, _ = k_cache.shape
    nb = block_table.shape[1]
    Lk = nb * bs
    rep = H // Hkv
    k = k_cache[block_table].reshape(B, Lk, Hkv, Dh)
    v = v_cache[block_table].reshape(B, Lk, Hkv, Dh)
    k = (lambda x, n, axis: torch.repeat_interleave(x, n, dim=axis))(k, rep, axis=2)
    v = (lambda x, n, axis: torch.repeat_interleave(x, n, dim=axis))(v, rep, axis=2)
    scores = torch.einsum("bhd,bkhd->bhk", q, k) * (Dh ** -0.5)
    pos = torch.arange(Lk)
    valid = pos[None, :] < ctx_lens[:, None]
    scores = torch.where(valid[:, None, :], scores, -1e9)
    p = _softmax(scores, axis=-1)
    return torch.einsum("bhk,bkhd->bhd", p, v)
```

```python
import sys
import argparse

HEADER = """; Kernarg layout for this problem (64 bytes, ptrs only, base s[0:1]):
"""
NAME = "standalone__paged_block_table_kv_radixattention__decode_kernel"


class Asm:
    def __init__(self):
        self.lines = []

    def __call__(self, s):
        self.lines.append("    " + s)

    def label(self, s):
        self.lines.append(s + ":")

    def c(self, s):
        self.lines.append("    ; " + s)

    def text(self):
        return "\n".join(self.lines) + "\n"


def vr(b, n):
    return f"v[{b}:{b + n - 1}]"


def gen(opt):
    a = Asm()
    nt = " nt" if opt.nt else ""
    NW = 8
    LDS_O = 0
    LDS_M = 8192
    LDS_L = 8192 + 64
    LDS_BYTES = 8192 + 128
    WS_ML = 256 * 1024

    V_KOFF = 1
    V_VOFF = 2
    V_TOK = 6
    V_NINF = 10
    V_T = 11
    V_Q = 12
    V_M = 28
    V_MP = 29
    V_LA = 30
    V_T2 = 31
    V_K = 32
    V_V = 96
    V_S = 160
    V_P = 176
    NVGPR = 184
    V_ACC = 32
    V_LACC = 64
    V_ONES = 68
    V_PT = 72

    S_KSRD = 20
    S_VSRD = 24
    S_BT = 28
    S_CTX = 32
    S_W = 33
    S_KVH = 34
    S_SPL = 35
    S_B0 = 36
    S_T = 37
    S_REM = 40
    S_C = 44
    S_PLO = 45
    S_PHI = 46
    S_SZ = 47
    S_MK = 48

    a("s_cmp_ge_u32 s2, 256")
    a("s_cbranch_scc1 L_end")
    a("s_load_dwordx16 s[4:19], s[0:1], 0")
    a("v_lshrrev_b32 v1, 6, v0")
    a("v_and_b32 v0, 63, v0")
    a(f"v_readfirstlane_b32 s{S_W}, v1")
    if opt.map == "A":
        a(f"s_lshr_b32 s{S_KVH}, s2, 4")
        a(f"s_and_b32 s{S_SPL}, s2, 15")
    else:
        a(f"s_and_b32 s{S_KVH}, s2, 15")
        a(f"s_lshr_b32 s{S_SPL}, s2, 4")
    a(f"v_and_b32 v{V_T}, 15, v0")
    a(f"v_lshrrev_b32 v{V_T2}, 4, v0")
    a(f"s_lshl_b32 s{S_T}, s{S_KVH}, 8")
    a(f"v_lshlrev_b32 v{V_KOFF}, 12, v{V_T}")
    a(f"v_lshl_add_u32 v{V_KOFF}, v{V_T2}, 4, v{V_KOFF}")
    a(f"v_add_u32 v{V_KOFF}, s{S_T}, v{V_KOFF}")
    a(f"v_lshlrev_b32 v{V_VOFF}, 14, v{V_T2}")
    a(f"v_lshl_add_u32 v{V_VOFF}, v{V_T}, 4, v{V_VOFF}")
    a(f"v_add_u32 v{V_VOFF}, s{S_T}, v{V_VOFF}")
    for r in range(1, 4):
        a(f"v_add_u32 v{V_VOFF + r}, {4096 * r}, v{V_VOFF}")
    a(f"v_and_b32 v{V_M}, 1, v0")
    a(f"v_lshlrev_b32 v{V_M}, 8, v{V_M}")
    a(f"v_lshl_add_u32 v{V_M}, v{V_T2}, 4, v{V_M}")
    a(f"s_lshl_b32 s{S_T}, s{S_KVH}, 9")
    a(f"v_add_u32 v{V_M}, s{S_T}, v{V_M}")
    a(f"s_lshl_b32 s{S_B0}, s{S_SPL}, 5")
    a(f"s_lshl_b32 s{S_T}, s{S_W}, 2")
    a(f"s_add_u32 s{S_B0}, s{S_B0}, s{S_T}")
    a(f"s_lshl_b32 s{S_T}, s{S_B0}, 2")
    a(f"s_mov_b32 s{S_SZ}, 0x2000000")
    a(f"s_mov_b32 s{S_KSRD + 3}, 0x00020000")
    a(f"s_mov_b32 s{S_VSRD + 3}, 0x00020000")
    a("s_waitcnt lgkmcnt(0)")
    a(f"s_load_dwordx4 s[{S_BT}:{S_BT + 3}], s[10:11], s{S_T}")
    a(f"s_load_dword s{S_CTX}, s[12:13], 0")
    for s in range(4):
        a(f"global_load_dwordx4 {vr(V_Q + 4 * s, 4)}, v{V_M}, s[4:5] offset:{64 * s}")
    a(f"s_mov_b32 s{S_KSRD}, s6")
    a(f"s_and_b32 s{S_KSRD + 1}, s7, 0xffff")
    a(f"s_mov_b32 s{S_VSRD}, s8")
    a(f"s_and_b32 s{S_VSRD + 1}, s9, 0xffff")
    a(f"v_lshlrev_b32 v{V_TOK}, 2, v{V_T2}")
    for r in range(1, 4):
        a(f"v_add_u32 v{V_TOK + r}, {r}, v{V_TOK}")
    a(f"v_mov_b32 v{V_NINF}, 0xff800000")
    a(f"s_mov_b32 s{S_C}, 0x3e0293ee")
    a(f"s_mov_b32 s{S_PLO}, 0x05040100")
    a(f"s_mov_b32 s{S_PHI}, 0x07060302")
    a(f"s_lshl_b32 s{S_T}, s{S_B0}, 4")
    a("s_waitcnt lgkmcnt(0)")
    a(f"s_cmp_le_i32 s{S_CTX}, 0")
    a(f"s_cselect_b32 s{S_C}, 0, s{S_C}")
    a(f"s_cselect_b32 s{S_CTX}, 0x2000, s{S_CTX}")
    a(f"s_min_i32 s{S_CTX}, s{S_CTX}, 0x2000")
    a(f"s_sub_i32 s{S_REM}, s{S_CTX}, s{S_T}")
    for q in range(4):
        a(f"s_lshl_b32 s{S_BT + q}, s{S_BT + q}, 16")
        if q > 0:
            a(f"s_sub_i32 s{S_REM + q}, s{S_REM}, {16 * q}")
        a(f"s_cmp_gt_i32 s{S_REM + q}, 0")
        a(f"s_cselect_b32 s{S_KSRD + 2}, s{S_SZ}, 0")
        for s in range(4):
            a(f"buffer_load_dwordx4 {vr(V_K + 16 * q + 4 * s, 4)}, v{V_KOFF}, s[{S_KSRD}:{S_KSRD + 3}], s{S_BT + q} offen offset:{64 * s}{nt}")
    if opt.kvbar:
        a("s_barrier")
    for q in range(4):
        a(f"s_cmp_gt_i32 s{S_REM + q}, 0")
        a(f"s_cselect_b32 s{S_VSRD + 2}, s{S_SZ}, 0")
        for r in range(4):
            G, j = q >> 1, (q & 1) * 4 + r
            a(f"buffer_load_dwordx4 {vr(V_V + 32 * G + 4 * j, 4)}, v{V_VOFF + r}, s[{S_VSRD}:{S_VSRD + 3}], s{S_BT + q} offen{nt}")
    for q in range(4):
        a(f"s_waitcnt vmcnt({28 - 4 * q})")
        for s in range(4):
            c = "0" if s == 0 else vr(V_S + 4 * q, 4)
            a(f"v_mfma_f32_16x16x32_bf16 {vr(V_S + 4 * q, 4)}, {vr(V_K + 16 * q + 4 * s, 4)}, {vr(V_Q + 4 * s, 4)}, {c}")
    a(f"v_and_b32 v{V_T}, 1, v0")
    a(f"v_lshlrev_b32 v{V_T}, 5, v{V_T}")
    a(f"s_lshl_b32 s{S_T}, s{S_W}, 2")
    a(f"v_add_u32 v{V_T2}, s{S_T}, v{V_T}")
    a("s_nop 7")
    a(f"s_cmp_ge_i32 s{S_REM + 3}, 16")
    a("s_cbranch_scc1 L_nomask")
    for q in range(4):
        for r in range(4):
            a(f"v_cmp_gt_i32 s[{S_MK + 2 * r}:{S_MK + 2 * r + 1}], s{S_REM + q}, v{V_TOK + r}")
        for r in range(4):
            a(f"v_cndmask_b32 v{V_S + 4 * q + r}, v{V_NINF}, v{V_S + 4 * q + r}, s[{S_MK + 2 * r}:{S_MK + 2 * r + 1}]")
    a.label("L_nomask")
    a(f"v_max3_f32 v{V_M}, v{V_S}, v{V_S + 1}, v{V_S + 2}")
    for i in range(3, 15, 2):
        a(f"v_max3_f32 v{V_M}, v{V_M}, v{V_S + i}, v{V_S + i + 1}")
    a(f"v_max_f32 v{V_M}, v{V_M}, v{V_S + 15}")
    a(f"v_mov_b32 v{V_MP}, v{V_M}")
    a("s_nop 1")
    a(f"v_permlane16_swap_b32 v{V_M}, v{V_MP}")
    a("s_nop 1")
    a(f"v_max_f32 v{V_M}, v{V_M}, v{V_MP}")
    a(f"v_mov_b32 v{V_MP}, v{V_M}")
    a("s_nop 1")
    a(f"v_permlane32_swap_b32 v{V_M}, v{V_MP}")
    a("s_nop 1")
    a(f"v_max_f32 v{V_M}, v{V_M}, v{V_MP}")
    a("s_mov_b64 exec, 3")
    a(f"ds_write_b32 v{V_T2}, v{V_M} offset:{LDS_M}")
    a("s_mov_b64 exec, -1")
    a("s_waitcnt lgkmcnt(0)")
    a("s_barrier")
    a(f"ds_read_b128 {vr(V_PT, 4)}, v{V_T} offset:{LDS_M}")
    a(f"ds_read_b128 {vr(V_PT + 4, 4)}, v{V_T} offset:{LDS_M + 16}")
    for i in range(4):
        a(f"v_mov_b32 v{V_ONES + i}, 0x3f803f80")
    a(f"v_mov_b32 v{V_M}, 0xff7fffff")
    a("s_waitcnt lgkmcnt(0)")
    a(f"v_max3_f32 v{V_M}, v{V_M}, v{V_PT}, v{V_PT + 1}")
    a(f"v_max3_f32 v{V_M}, v{V_M}, v{V_PT + 2}, v{V_PT + 3}")
    a(f"v_max3_f32 v{V_M}, v{V_M}, v{V_PT + 4}, v{V_PT + 5}")
    a(f"v_max3_f32 v{V_M}, v{V_M}, v{V_PT + 6}, v{V_PT + 7}")
    a(f"v_mul_f32 v{V_MP}, s{S_C}, v{V_M}")
    for i in range(16):
        a(f"v_fma_f32 v{V_S + i}, v{V_S + i}, s{S_C}, -v{V_MP}")
    for i in range(16):
        a(f"v_exp_f32 v{V_S + i}, v{V_S + i}")
    a("s_nop 0")
    for i in range(8):
        a(f"v_cvt_pk_bf16_f32 v{V_P + i}, v{V_S + 2 * i}, v{V_S + 2 * i + 1}")
    a(f"v_and_b32 v{V_LA}, 15, v0")
    a(f"v_lshlrev_b32 v{V_LA}, 5, v{V_LA}")
    a(f"s_lshl_b32 s{S_T}, s{S_W}, 10")
    a(f"v_add_u32 v{V_LA}, s{S_T}, v{V_LA}")
    for G in range(2):
        a(f"v_mfma_f32_16x16x32_bf16 {vr(V_LACC, 4)}, {vr(V_P + 4 * G, 4)}, {vr(V_ONES, 4)}, {'0' if G == 0 else vr(V_LACC, 4)}")
        a(f"s_waitcnt vmcnt({8 - 8 * G})")
        for w in range(4):
            T = V_PT + 8 * (w & 1)
            for i in range(4):
                x = V_V + 32 * G + 4 * (2 * i) + w
                y = V_V + 32 * G + 4 * (2 * i + 1) + w
                a(f"v_perm_b32 v{T + i}, v{y}, v{x}, s{S_PLO}")
            for i in range(4):
                x = V_V + 32 * G + 4 * (2 * i) + w
                y = V_V + 32 * G + 4 * (2 * i + 1) + w
                a(f"v_perm_b32 v{T + 4 + i}, v{y}, v{x}, s{S_PHI}")
            for hi in range(2):
                e = 2 * w + hi
                if hi == 1:
                    a("s_nop 0")
                c = "0" if G == 0 else vr(V_ACC + 4 * e, 4)
                a(f"v_mfma_f32_16x16x32_bf16 {vr(V_ACC + 4 * e, 4)}, {vr(V_P + 4 * G, 4)}, {vr(T + 4 * hi, 4)}, {c}")
    a(f"v_and_b32 v{V_T2}, 1, v0")
    a(f"v_lshlrev_b32 v{V_T2}, 2, v{V_T2}")
    a(f"s_lshl_b32 s{S_T}, s{S_W}, 3")
    a(f"v_mov_b32 v{V_T}, s{S_T}")
    a("s_mov_b64 exec, 0xffff")
    a(f"ds_write_b64 v{V_T}, {vr(V_LACC, 2)} offset:{LDS_L}")
    for e in range(8):
        if e == 7:
            a("s_nop 3")
        a(f"ds_write2_b32 v{V_LA}, v{V_ACC + 4 * e}, v{V_ACC + 4 * e + 1} offset0:{e} offset1:{128 + e}")
    a("s_mov_b64 exec, -1")
    a("s_waitcnt lgkmcnt(0)")
    a("s_barrier")
    a(f"s_cmp_lg_u32 s{S_W}, 0")
    a("s_cbranch_scc1 L_end")
    R = 96
    a(f"v_lshlrev_b32 v{V_LA}, 4, v0")
    for w in range(NW):
        a(f"ds_read_b128 {vr(R + 4 * w, 4)}, v{V_LA} offset:{LDS_O + 1024 * w}")
    a(f"v_add_u32 v{V_M}, {LDS_L}, v{V_T2}")
    for w in range(0, NW, 2):
        a(f"ds_read2_b32 {vr(R + 32 + w, 2)}, v{V_M} offset0:{2 * w} offset1:{2 * w + 2}")
    a(f"s_lshl_b32 s{S_T}, s{S_KVH}, 4")
    a(f"s_add_u32 s{S_T}, s{S_T}, s{S_SPL}")
    a(f"s_lshl_b32 s{S_T}, s{S_T}, 10")
    a(f"v_add_u32 v{V_T}, s{S_T}, v{V_LA}")
    a(f"s_lshl_b32 s{S_T}, s{S_KVH}, 8")
    a(f"s_add_u32 s{S_B0}, s{S_T}, {WS_ML}")
    a(f"s_lshl_b32 s{S_T}, s{S_SPL}, 2")
    a(f"s_add_u32 s{S_T}, s{S_T}, s{S_B0}")
    a(f"v_lshlrev_b32 v{V_T2}, 5, v{V_T2}")
    a(f"v_add_u32 v{V_T2}, s{S_T}, v{V_T2}")
    for w in range(1, NW):
        a(f"s_waitcnt lgkmcnt({NW // 2 + NW - 1 - w})")
        a(f"v_pk_add_f32 {vr(R, 2)}, {vr(R, 2)}, {vr(R + 4 * w, 2)}")
        a(f"v_pk_add_f32 {vr(R + 2, 2)}, {vr(R + 2, 2)}, {vr(R + 4 * w + 2, 2)}")
    a(f"global_store_dwordx4 v{V_T}, {vr(R, 4)}, s[18:19] sc1")
    a("s_waitcnt lgkmcnt(0)")
    for w in range(1, NW):
        a(f"v_add_f32 v{R + 32}, v{R + 32}, v{R + 32 + w}")
    a("s_mov_b64 exec, 3")
    a(f"global_store_dword v{V_T2}, v{V_MP}, s[18:19] sc1")
    a(f"global_store_dword v{V_T2}, v{R + 32}, s[18:19] offset:64 sc1")
    a("s_mov_b64 exec, 1")
    a(f"s_lshl_b32 s{S_T}, s{S_KVH}, 2")
    a(f"v_mov_b32 v{V_T}, s{S_T}")
    a(f"v_mov_b32 v{V_M}, 1")
    a("s_waitcnt vmcnt(0)")
    a(f"global_atomic_add v{V_M}, v{V_T}, v{V_M}, s[16:17] sc0")
    a("s_mov_b64 exec, -1")
    a(f"s_lshl_b32 s{S_T}, s{S_KVH}, 14")
    a(f"v_add_u32 v{V_T}, s{S_T}, v{V_LA}")
    a(f"v_lshrrev_b32 v{V_T2}, 5, v0")
    a(f"v_lshlrev_b32 v{V_T2}, 7, v{V_T2}")
    a(f"v_add_u32 v{V_T2}, s{S_B0}, v{V_T2}")
    a(f"v_add_u32 v{V_LA}, 0x2000, v{V_T}")
    a("s_waitcnt vmcnt(0)")
    a(f"v_readfirstlane_b32 s{S_T}, v{V_M}")
    a("s_nop 3")
    a(f"s_cmp_lg_u32 s{S_T}, 15")
    a("s_cbranch_scc1 L_end")
    ML = 32
    O = 96
    for i in range(8):
        a(f"global_load_dwordx4 {vr(ML + 4 * i, 4)}, v{V_T2}, s[18:19] offset:{16 * i} sc1")
    for s in range(16):
        base = V_T if s < 4 else None
        if s < 4:
            a(f"global_load_dwordx4 {vr(O + 4 * s, 4)}, v{V_T}, s[18:19] offset:{1024 * s} sc1")
        elif s < 12:
            a(f"global_load_dwordx4 {vr(O + 4 * s, 4)}, v{V_LA}, s[18:19] offset:{1024 * s - 8192} sc1")
        else:
            if s == 12:
                a(f"v_add_u32 v{V_T}, 0x3000, v{V_T}")
            a(f"global_load_dwordx4 {vr(O + 4 * s, 4)}, v{V_T}, s[18:19] offset:{1024 * (s - 12)} sc1")
    a("s_waitcnt vmcnt(20)")
    a(f"v_max3_f32 v{V_M}, v{ML}, v{ML + 1}, v{ML + 2}")
    for i in range(3, 15, 2):
        a(f"v_max3_f32 v{V_M}, v{V_M}, v{ML + i}, v{ML + i + 1}")
    a(f"v_max_f32 v{V_M}, v{V_M}, v{ML + 15}")
    for i in range(16):
        a(f"v_sub_f32 v{ML + i}, v{ML + i}, v{V_M}")
    for i in range(16):
        a(f"v_exp_f32 v{ML + i}, v{ML + i}")
    a("s_waitcnt vmcnt(16)")
    a(f"v_mul_f32 v{V_MP}, v{ML}, v{ML + 16}")
    for i in range(1, 16):
        a(f"v_fmac_f32 v{V_MP}, v{ML + i}, v{ML + 16 + i}")
    a(f"v_rcp_f32 v{V_MP}, v{V_MP}")
    A = 64
    for s in range(16):
        a(f"s_waitcnt vmcnt({15 - s})")
        for i in range(4):
            if s == 0:
                a(f"v_mul_f32 v{A + i}, v{ML}, v{O + i}")
            else:
                a(f"v_fmac_f32 v{A + i}, v{ML + s}, v{O + 4 * s + i}")
    for i in range(4):
        a(f"v_mul_f32 v{A + i}, v{V_MP}, v{A + i}")
    a(f"v_cvt_pk_bf16_f32 v{A + 4}, v{A}, v{A + 1}")
    a(f"v_cvt_pk_bf16_f32 v{A + 5}, v{A + 2}, v{A + 3}")
    a(f"s_lshl_b32 s{S_T}, s{S_KVH}, 9")
    a(f"v_lshlrev_b32 v{V_T}, 3, v0")
    a(f"v_add_u32 v{V_T}, s{S_T}, v{V_T}")
    a(f"global_store_dwordx2 v{V_T}, {vr(A + 4, 2)}, s[14:15]")
    a.label("L_end")
    a("s_endpgm")

    out = HEADER
    out += f"; @launch grid=(256,1,1) block=({64 * NW},1,1) lds={LDS_BYTES}\n"
    out += '.amdgcn_target "amdgcn-amd-amdhsa--gfx950"\n.text\n'
    out += f".globl {NAME}\n.p2align 8\n.type {NAME},@function\n{NAME}:\n"
    out += a.text()
    out += f""".section .rodata,"a"
.p2align 6
.amdhsa_kernel {NAME}
  .amdhsa_next_free_vgpr {NVGPR}
  .amdhsa_next_free_sgpr 64
  .amdhsa_accum_offset {NVGPR}
  .amdhsa_group_segment_fixed_size 0
  .amdhsa_kernarg_size 64
  .amdhsa_user_sgpr_count 2
  .amdhsa_user_sgpr_kernarg_segment_ptr 1
  .amdhsa_system_sgpr_workgroup_id_x 1
.end_amdhsa_kernel
"""
    return out


if __name__ == "__main__":
    p = argparse.ArgumentParser()
    p.add_argument("-o", default="standalone__paged_block_table_kv_radixattention__decode.s")
    p.add_argument("--nt", type=int, default=0)
    p.add_argument("--kvbar", type=int, default=0)
    p.add_argument("--map", default="A")
    opt = p.parse_args()
    open(opt.o, "w").write(gen(opt))
```
